```python
import torch

def _softmax(x, axis=-1):
    return torch.softmax(x, dim=axis)
def _gelu(x):
    return torch.nn.functional.gelu(x, approximate="tanh")
def _silu(x):
    return torch.nn.functional.silu(x)
def _sigmoid(x):
    return torch.sigmoid(x)
def _layernorm(x, axis=-1, eps=1e-5):
    m = x.mean(dim=axis, keepdim=True)
    v = x.var(dim=axis, keepdim=True, unbiased=False)
    return (x - m) / torch.sqrt(v + eps)
def _scatter_add(tgt, idx, src, axis=0):
    return tgt.clone().index_add_(axis, idx, src)
def _segment_sum(src, seg, n):
    out = torch.zeros((n,) + src.shape[1:], dtype=src.dtype)
    return out.index_add_(0, seg, src)
def _pad(x, pw):
    flat = tuple(v for pair in reversed(pw) for v in pair)
    return torch.nn.functional.pad(x, flat)

kernel_name = 'parallel_sum__linear_attn_block__glu_gated_reglu__prompt'

def setup_inputs():

    _w = (lambda a: (lambda t: t.to(torch.bfloat16) if t.is_floating_point() else t)(torch.as_tensor(a)))
    def _A_setup():
        B, S, D = 1, 2048, 576
        return {
            "x": _w((lambda *s: torch.randn(*s, dtype=torch.bfloat16) * 0.05)(B, S, D)),
            "wqkv": _w((lambda *s: torch.randn(*s, dtype=torch.bfloat16) * 0.05)(D, 3 * D)),
            "wo": _w((lambda *s: torch.randn(*s, dtype=torch.bfloat16) * 0.05)(D, D)),
        }
    _A_in = _A_setup()

    def _B_setup():
        B, S, D, F = 1, 2048, 576, 4608
        return {
            "x": _w((lambda *s: torch.randn(*s, dtype=torch.bfloat16) * 0.05)(B, S, D)),
            "W_gate": _w((lambda *s: torch.randn(*s, dtype=torch.bfloat16) * 0.2)(D, F) * (2.0 / D) ** 0.5),
            "W_up": _w((lambda *s: torch.randn(*s, dtype=torch.bfloat16) * 0.2)(D, F) * (2.0 / D) ** 0.5),
            "W_down": _w((lambda *s: torch.randn(*s, dtype=torch.bfloat16) * 0.2)(F, D) * (1.0 / F) ** 0.5),
        }
    _B_in = _B_setup()

    return {
        "A_x": _A_in["x"],
        "A_wqkv": _A_in["wqkv"],
        "A_wo": _A_in["wo"],
        "B_x": _B_in["x"],
        "B_W_gate": _B_in["W_gate"],
        "B_W_up": _B_in["W_up"],
        "B_W_down": _B_in["W_down"],
    }

def reference(A_x, A_wqkv, A_wo, B_x, B_W_gate, B_W_up, B_W_down):
    def _A_ref(x, wqkv, wo):
        B, S, D = x.shape
        H = 32; Dh = D // H
        qkv = (lambda x, *d: x.permute(*d))((x @ wqkv).reshape(B, S, 3, H, Dh), 2, 0, 3, 1, 4)
        q, k, v = qkv[0], qkv[1], qkv[2]
        phi = lambda t: torch.where(t > 0, t + 1, torch.exp(t)) + 1e-6
        pq, pk = phi(q), phi(k)
        kv = torch.einsum("bhsd,bhse->bhde", pk, v)
        z = torch.einsum("bhsd->bhd", pk)
        num = torch.einsum("bhqd,bhde->bhqe", pq, kv)
        den = torch.einsum("bhqd,bhd->bhq", pq, z)[..., None] + 1e-6
        o = num / den
        return (lambda x, *d: x.permute(*d))(o, 0, 2, 1, 3).reshape(B, S, D) @ wo

    def _B_ref(x, W_gate, W_up, W_down):
        gate = torch.einsum("bsd,df->bsf", x, W_gate)
        up = torch.einsum("bsd,df->bsf", x, W_up)
        gate = gate * (lambda x, dt: x.to(dt))(gate > 0, gate.dtype)
        h = gate * up
        return torch.einsum("bsf,fd->bsd", h, W_down)

    x = A_x
    xn = _layernorm(x, axis=-1)
    return x + _A_ref(xn, A_wqkv, A_wo) + _B_ref(xn, B_W_gate, B_W_up, B_W_down)
```

```python
import re
RX = re.compile(r'\b([vas])(?:\[(\d+):(\d+)\]|(\d+)\b)')
def regs(tok):
    out = []
    for m in RX.finditer(tok):
        k = m.group(1)
        if m.group(2) is not None: out += [(k, i) for i in range(int(m.group(2)), int(m.group(3)) + 1)]
        else: out.append((k, int(m.group(4))))
    if 'vcc' in tok: out.append(('s', 'vcc'))
    return out
TRANS = ('v_exp_f32', 'v_rcp_f32', 'v_sqrt_f32', 'v_rsq_f32', 'v_log_f32')
class Em:
    def __init__(s):
        s.L = []; s.t = 0
        s.w = {}
        s.rd = {}
        s.vm = []; s.lg = []
        s.vmdone = 0; s.lgdone = 0
        s.nops = 0
    def raw(s, x): s.L.append(x)
    def e(s, x, tag=None):
        op, _, rest = x.partition(' ')
        ops = [o.strip() for o in re.split(r',(?![^\[]*\])', rest)] if rest else []
        need = 0
        def chk(r, table):
            nonlocal need
            if r in s.w:
                t, k = s.w[r]
                if k in table: need = max(need, table[k] - (s.t - t - 1))
        dst = []; kind = None
        if op.startswith('v_mfma'):
            dst = regs(ops[0]); kind = 'mfma'
            for r in regs(ops[1]) + regs(ops[2]): chk(r, {'mfma': 12, 'valu': 2, 'trans': 2, 'dot': 3})
            c = regs(ops[3])
            for r in c: chk(r, {'valu': 2, 'trans': 2} if c == dst else {'mfma': 12, 'valu': 2, 'trans': 2})
            if not c:
                for r in dst: chk(r, {'valu': 2})
        elif op.startswith('v_'):
            nd = 2 if op.startswith('v_permlane') and 'swap' in op else 1
            for o in ops[:nd]: dst += regs(o)
            src = []
            for o in ops[(0 if nd == 2 else 1):]: src += regs(o)
            if op.startswith('v_cndmask') and len(ops) == 3: src.append(('s', 'vcc'))
            if op.startswith('v_dot2c') or op.startswith('v_fmac'): src += dst
            kind = 'trans' if op.replace('_e64', '') in TRANS else 'valu'
            tb = {'mfma': 12, 'trans': 1}
            if op.startswith('v_dot'):
                kind = 'dot'
                for r in regs(ops[1]) + regs(ops[2]): chk(r, {'dot': 3})
            else:
                for r in src + dst: chk(r, {'dot': 3})
            if op.startswith('v_permlane') or op.startswith('v_readfirstlane') or op.startswith('v_readlane'): tb = {'mfma': 12, 'trans': 2, 'valu': 2}
            for r in src:
                if r[0] == 's': chk(r, {'valu': 2})
                else: chk(r, tb)
            for r in dst:
                chk(r, {'mfma': 12})
                if r in s.rd:
                    t, k = s.rd[r]; need = max(need, {'st': 2, 'c': 8}[k] - (s.t - t - 1))
        elif op.startswith('buffer_') or op.startswith('ds_'):
            allr = []
            for o in ops: allr += regs(o)
            for r in allr:
                if r[0] == 's': chk(r, {'valu': 5})
                else: chk(r, {'mfma': 12, 'trans': 1, 'dot': 3})
            if ' lds' in x: chk(('s', 'm0'), {'salu': 1})
            if 'store' in op or op.startswith('ds_write') or op.startswith('ds_add'):
                pass
            else:
                if ' lds' not in x:
                    dst = regs(ops[0]); kind = 'mem'
        elif op.startswith('s_') and ops:
            if ops[0] == 'm0': dst = [('s', 'm0')]; kind = 'salu'
            elif not op.startswith('s_cmp') and not op.startswith('s_waitcnt') and not op.startswith('s_nop') and not op.startswith('s_cbranch'):
                dst = regs(ops[0]); kind = 'salu'
        while need > 0:
            n = min(need, 16)
            s.L.append('s_nop %d' % (n - 1)); s.t += n; need -= n; s.nops += 1
        s.L.append(x)
        for r in dst: s.w[r] = (s.t, kind)
        if op.startswith('v_mfma'):
            for r in regs(ops[3]): s.rd[r] = (s.t, 'c')
        if op.startswith('buffer_store'):
            for r in regs(ops[0]): s.rd[r] = (s.t, 'st')
        if op.startswith('ds_write') or op.startswith('ds_add'):
            for o in ops[1:]:
                for r in regs(o): s.rd[r] = (s.t, 'st')
        s.t += (int(ops[0]) + 1) if op == 's_nop' else 1
        if op.startswith('buffer_'): s.vm.append(tag)
        if op.startswith('ds_'): s.lg.append(tag)
    def _pos(s, lst, tag):
        for i in range(len(lst) - 1, -1, -1):
            if lst[i] == tag: return i + 1
        raise KeyError(tag)
    def vm_covered(s, tag): return s._pos(s.vm, tag) <= s.vmdone
    def wait(s, vm=None, lg=None):
        parts = []
        if vm is not None:
            p = len(s.vm) if vm == 'all' else s._pos(s.vm, vm)
            if p > s.vmdone:
                n = min(63, len(s.vm) - p); parts.append('vmcnt(%d)' % n); s.vmdone = len(s.vm) - n
        if lg is not None:
            p = len(s.lg) if lg == 'all' else s._pos(s.lg, lg)
            if p > s.lgdone:
                n = min(15, len(s.lg) - p); parts.append('lgkmcnt(%d)' % n); s.lgdone = len(s.lg) - n
        if parts: s.e('s_waitcnt ' + ' '.join(parts))
```

```python
import sys
from em import Em
NAME = "parallel_sum__linear_attn_block__glu_gated_reglu__prompt"
def cmap(n): return 16 * ((n >> 2) & 1) + 4 * (n >> 3) + (n & 3)
def mask(f):
    m = 0
    for l in range(64):
        if f(cmap(l & 31), l >> 5): m |= 1 << l
    return m
KD = '''.section .rodata,"a"
.p2align 6
.amdhsa_kernel %s
  .amdhsa_next_free_vgpr %d
  .amdhsa_next_free_sgpr 102
  .amdhsa_accum_offset %d
  .amdhsa_group_segment_fixed_size 0
  .amdhsa_kernarg_size 80
  .amdhsa_user_sgpr_count 2
  .amdhsa_user_sgpr_kernarg_segment_ptr 1
  .amdhsa_system_sgpr_workgroup_id_x 1
.end_amdhsa_kernel
'''
KVOFF = 64 << 20
STOFF = 96 << 20
def gen(DEF=2, NS=4, XF=4, XI=12, XN=20, WE=2, TOUCH=0, LJ=1, GSP=0, NUP=18, STF='', PRE=1, RING=34, BAR=4, PF=6, KE=(9, 2, 2, 2, 2, 3, 3, 2), SL=(6, 5, 5, 5, 5, 6, 6, 5), STAMP=False, RAMP=8, V2=False, GDELAY=48, SDELAY=40, PDELAY=30, KT1=4):
    E = Em(); e = E.e
    SX, SQ, SO, SG, SD, SOUT, SDBG, SWS = ['s[%d:%d]' % (b, b + 3) for b in (8, 12, 16, 20, 24, 28, 32, 36)]
    X = 112; FB = 88
    SCR = RING * 4096; E1W = SCR; PREG = SCR + 9216
    assert SCR + 24576 <= 163840
    def slot(q): return 36 + q if q < 4 else (q - 4) % RING
    vL, vQ, vGP, vGS, vDP, vDS, vWO = 1, 2, 3, 4, 5, 6, 7
    vP = [[8, 9, 10], [11, 12, 13]]; vS = [14, 15, 16]; vE = [17, 18]
    vC, vST, vFL = 19, 21, 0; vRS, vNB = 22, 60
    stamps = []
    def stamp(name=""):
        if STAMP:
            k = len(stamps); stamps.append(name)
            E.raw("s_memtime s[96:97]"); E.raw("s_memrealtime s[98:99]"); E.raw("s_waitcnt lgkmcnt(0)"); E.lgdone = len(E.lg)
            E.raw("v_writelane_b32 v20, s96, %d" % k); E.raw("v_writelane_b32 v20, s98, %d" % (k + 32))
    E.raw("%s_kernel:" % NAME)
    e("s_cmp_ge_u32 s2, 256"); e("s_cbranch_scc1 L_done")
    e("s_load_dwordx16 s[64:79], s[0:1], 0"); e("s_load_dwordx4 s[80:83], s[0:1], 64")
    stamp()
    e("v_lshrrev_b32 v24, 6, v0"); e("v_and_b32 v1, 63, v0"); e("v_readfirstlane_b32 s3, v24")
    e("s_and_b32 s4, s2, %d" % ((16 >> LJ) - 1)); e("s_lshl_b32 s4, s4, %d" % LJ); e("s_bfe_u32 s5, s2, 0x%x" % ((LJ << 16) | 3)); e("s_add_u32 s4, s4, s5")
    e("s_and_b32 s5, s2, 7"); e("s_lshr_b32 s5, s5, %d" % (4 - LJ)); e("s_lshl_b32 s5, s5, %d" % (5 - LJ)); e("s_lshr_b32 s6, s2, %d" % (3 + LJ)); e("s_add_u32 s5, s5, s6")
    e("s_lshl_b32 s6, s5, 7"); e("s_lshl_b32 s7, s3, 5"); e("s_add_u32 s6, s6, s7")
    e("v_lshrrev_b32 v26, 3, v1"); e("v_add_u32 v25, s6, v26"); e("v_mul_u32_u24 v25, 1152, v25"); e("v_lshrrev_b32 v26, 4, v1"); e("v_and_b32 v27, 7, v1"); e("v_xor_b32 v26, v26, v27")
    e("v_lshl_add_u32 v52, v26, 4, v25"); e("v_xor_b32 v53, 64, v52"); e("v_add_u32 v53, 9216, v53")
    e("v_and_b32 v26, 31, v1"); e("v_lshrrev_b32 v27, 5, v1"); e("s_mov_b32 s101, 18432")
    e("s_mov_b32 s10, %d" % (2048 * 1152)); e("s_mov_b32 s11, 0x20000")
    e("s_mov_b32 s14, %d" % (576 * 3456)); e("s_mov_b32 s15, 0x20000")
    e("v_lshrrev_b32 v28, 4, v1"); e("v_bfe_u32 v29, v1, 2, 2"); e("v_xor_b32 v29, v29, v28"); e("v_and_b32 v30, 3, v1")
    e("v_add_u32 v31, 1, v29"); e("v_and_b32 v31, 3, v31"); e("v_mul_u32_u24 v31, 576, v31"); e("v_lshl_add_u32 v31, v30, 3, v31")
    e("v_min_u32 v32, 2, v30"); e("v_mul_u32_u24 v32, 576, v32"); e("v_add_u32 v32, 28, v32")
    e("v_cmp_eq_u32 vcc, 2, v29"); e("s_lshl_b32 s7, s3, 2"); e("v_add_u32 v28, s7, v28"); e("v_cndmask_b32 v31, v31, v32, vcc")
    e("s_mul_i32 s7, s4, 36"); e("v_add_u32 v31, s7, v31"); e("v_mul_u32_u24 v28, 3456, v28"); e("v_lshl_add_u32 v%d, v31, 1, v28" % vQ)
    e("s_lshl_b32 s40, s3, 10")
    if PRE:
        e("v_mul_u32_u24 v33, 57, v1"); e("v_lshrrev_b32 v33, 9, v33"); e("v_mul_u32_u24 v34, 9, v33"); e("v_sub_u32 v34, v1, v34"); e("v_min_u32 v33, 5, v33")
        e("s_lshr_b32 s6, s2, %d" % (3 + LJ)); e("s_mul_i32 s6, s6, 36"); e("s_mul_i32 s7, s3, 9"); e("s_add_u32 s6, s6, s7"); e("v_add_u32 v34, s6, v34"); e("v_mul_u32_u24 v34, 3456, v34")
        e("v_lshrrev_b32 v35, 1, v33"); e("v_mul_u32_u24 v35, 1152, v35"); e("v_and_b32 v33, 1, v33"); e("v_mul_u32_u24 v33, 68, v33"); e("v_add3_u32 v34, v34, v35, v33")
        e("s_mul_i32 s6, s4, 72")
    e("s_waitcnt lgkmcnt(0)")
    stamp('ka')
    e("s_mov_b32 s8, s64"); e("s_mov_b32 s9, s65"); e("s_mov_b32 s12, s66"); e("s_mov_b32 s13, s67")
    xis = [0]
    def xdma():
        c = xis[0]
        if c >= 36: return
        xis[0] += 1
        E.e("s_add_u32 m0, s40, %d" % (c * 4096 - (c >> 2) * 128))
        E.e("buffer_load_dwordx4 v%d, %s, %s offen offset:%d lds" % (52 + (c & 1), SX, "s101" if c & 2 else "0", (c >> 2) * 128), ('x', c))
    quads = []
    for s in range(36): quads.append((vQ, SQ, s * 16 * 3456, 0))
    for u in range(4):
        for s in range(36): quads.append((vGP, SG, "s%d" % (48 + s), u * 128))
    for s in range(18): quads.append((vGS, SG, "s%d" % (48 + 2 * s), 0))
    sched = [(p, k) for p in range(DEF) for k in range(8)] + [(p, k) for p in range(DEF) for k in (8, 9)] + [(p, k) for p in range(DEF, 9) for k in range(10)]
    for p, k in sched: quads.append((vDP, SD, "s%d" % (84 + k), p * 128) if k < 8 else (vDS, SD, "0", p * 128) if k == 8 else (vWO, SO, "0", p * 128))
    NQ = len(quads)
    def dma(q):
        v, srd, so, io = quads[q]
        m = slot(q) * 4096 - io
        if m < 0: return ["s_mov_b32 m0, s40", "s_add_u32 s41, %s, %d" % (so, io)], "buffer_load_dwordx4 v%d, %s, s41 offen lds" % (v, srd)
        a = ["s_add_u32 m0, s40, %d" % m]
        if not isinstance(so, str): a.append("s_mov_b32 s41, %d" % so); so = "s41"
        return a, "buffer_load_dwordx4 v%d, %s, %s offen offset:%d lds" % (v, srd, so, io)
    issued = 0
    def issue_all(n):
        nonlocal issued
        while issued < n:
            d = dma(issued); [e(y) for y in d[0]]; e(d[1], ('q', issued)); issued += 1
    if PRE:
        for k in range(1 << (LJ - 1)):
            e("buffer_load_dword v54, v34, %s, s6 offen" % SQ, 'pre'); e("s_add_u32 s6, s6, %d" % ((32 >> LJ) * 36 * 3456))
    for k in range(XF): xdma()
    issue_all(4)
    cnt = [0]
    def e(x, tag=None):
        E.e(x, tag); cnt[0] += 1
        if cnt[0] % XI == 0 and xis[0] < XN and not x.startswith('s_cmp') and not x.startswith('s_cselect_b32 s20'): xdma()
    e("s_cmp_ge_u32 s3, 2"); e("s_cselect_b32 s20, s74, s72"); e("s_cselect_b32 s21, s75, s73"); e("s_mov_b32 s22, %d" % (576 * 9216)); e("s_mov_b32 s23, 0x20000")
    for b, src, sz in ((16, 68, 576 * 1152), (24, 76, 4608 * 1152), (28, 78, 2048 * 1152), (32, 80, 256), (36, 82, 1 << 28)):
        e("s_mov_b32 s%d, s%d" % (b, src)); e("s_mov_b32 s%d, s%d" % (b + 1, src + 1)); e("s_mov_b32 s%d, %d" % (b + 2, sz)); e("s_mov_b32 s%d, 0x20000" % (b + 3))
    e("s_and_b32 s6, s4, 1"); e("s_mul_i32 s7, s4, 288"); e("s_lshl_b32 s42, s6, 5"); e("s_add_u32 s42, s42, s7")
    e("s_xor_b32 s6, s6, 1"); e("s_lshl_b32 s43, s6, 8"); e("s_add_u32 s43, s43, s7")
    e("v_lshrrev_b32 v28, 3, v1"); e("v_and_b32 v29, 7, v1"); e("v_and_b32 v30, 2, v28"); e("v_xor_b32 v29, v29, v30"); e("v_lshlrev_b32 v29, 4, v29")
    e("s_and_b32 s6, s3, 1"); e("s_lshr_b32 s7, s3, 1")
    e("s_lshl_b32 s44, s6, 3"); e("v_add_u32 v30, s44, v28"); e("v_mul_u32_u24 v30, 9216, v30"); e("s_lshl_b32 s44, s42, 1"); e("v_add3_u32 v%d, v30, v29, s44" % vGP)
    e("s_lshl_b32 s44, s6, 5"); e("s_lshl_b32 s45, s7, 3"); e("s_add_u32 s44, s44, s45"); e("s_add_u32 s44, s44, s42")
    e("v_add_u32 v30, s44, v28"); e("v_mul_u32_u24 v30, 1152, v30"); e("v_add_u32 v%d, v30, v29" % vDP)
    e("s_lshl_b32 s44, s6, 4"); e("s_add_u32 s44, s44, s45"); e("s_add_u32 s45, s44, s43")
    e("v_add_u32 v30, s45, v28"); e("v_mul_u32_u24 v30, 1152, v30"); e("v_add_u32 v%d, v30, v29" % vDS)
    e("s_mul_i32 s46, s4, 36"); e("s_add_u32 s45, s44, s46")
    e("v_add_u32 v30, s45, v28"); e("v_mul_u32_u24 v30, 1152, v30"); e("v_add_u32 v%d, v30, v29" % vWO)
    e("s_add_u32 s45, s46, 28"); e("v_add_u32 v30, s45, v28"); e("v_mul_u32_u24 v30, 1152, v30"); e("s_lshl_b32 s45, s3, 7"); e("v_add3_u32 v%d, v30, v29, s45" % 30); e("v_accvgpr_write_b32 a183, v30")
    e("v_lshrrev_b32 v28, 2, v1"); e("s_lshl_b32 s44, s6, 4"); e("v_add_u32 v28, s44, v28"); e("v_mul_u32_u24 v28, 9216, v28"); e("v_and_b32 v29, 3, v1"); e("v_lshlrev_b32 v29, 4, v29")
    e("s_lshl_b32 s44, s43, 1"); e("v_add3_u32 v%d, v28, v29, s44" % vGS)
    e("v_bfe_u32 v28, v1, 2, 2"); e("v_and_b32 v29, 1, v1"); e("v_bfe_u32 v30, v1, 1, 1"); e("v_and_b32 v31, 16, v1"); e("v_lshl_add_u32 v30, v30, 3, v31")
    e("v_lshl_add_u32 v31, v29, 5, v30")
    e("v_lshl_add_u32 v32, v28, 6, v31"); e("v_lshl_add_u32 v%d, v27, 9, v32" % vS[0])
    e("v_lshl_add_u32 v32, v29, 6, v30"); e("v_lshl_add_u32 v32, v28, 7, v32"); e("v_and_b32 v33, 8, v1"); e("v_lshl_add_u32 v32, v33, 2, v32")
    e("v_add_u32 v%d, %d, v32" % (vE[0], E1W)); e("v_xor_b32 v%d, 32, v%d" % (vE[1], vE[0]))
    e("v_lshl_add_u32 v%d, v27, 10, v32" % vP[0][0]); e("v_xor_b32 v%d, 32, v%d" % (vP[1][0], vP[0][0]))
    for r in (vP[0], vP[1], vS):
        e("v_add_u32 v%d, 0x10000, v%d" % (r[1], r[0])); e("v_add_u32 v%d, 0x20000, v%d" % (r[2], r[0]))
    e("v_lshl_add_u32 v32, v28, 8, v31"); e("v_lshl_add_u32 v32, v27, 11, v32"); e("v_lshl_add_u32 v40, v28, 6, v32")
    for t in range(1, 4): e("v_xor_b32 v%d, %d, v40" % (40 + 3 * t, 64 * t))
    for t in range(4): e("v_add_u32 v%d, 0x10000, v%d" % (41 + 3 * t, 40 + 3 * t)); e("v_add_u32 v%d, 0x20000, v%d" % (42 + 3 * t, 40 + 3 * t))
    e("s_lshl_b32 s44, s5, 4"); e("s_add_u32 s44, s44, s4"); e("s_mul_i32 s44, s44, 36"); e("s_add_u32 s44, s44, s3"); e("s_lshl_b32 s44, s44, 12")
    e("v_lshl_add_u32 v%d, v1, 4, s44" % vST)
    e("s_lshl_b32 s44, s5, 4"); e("s_add_u32 s44, s44, s4"); e("v_mov_b32 v28, s44"); e("v_cmp_eq_u32 vcc, 0, v0"); e("v_mov_b32 v29, 0x7fffff00"); e("v_cndmask_b32 v%d, v29, v28, vcc" % vFL)
    e("v_lshrrev_b32 v28, 3, v26"); e("v_lshlrev_b32 v28, 12, v28"); e("v_and_b32 v29, 7, v26"); e("v_lshl_add_u32 v28, v29, 7, v28"); e("v_bfe_u32 v29, v26, 1, 3"); e("v_xor_b32 v29, v29, v27")
    e("v_lshl_add_u32 v28, v29, 4, v28"); e("v_add_u32 v56, s40, v28")
    for k in range(1, 4): e("v_xor_b32 v%d, %d, v56" % (56 + k, 32 * k))
    for k in range(4): e("v_add_u32 v%d, 0x10000, v%d" % (62 + k, 56 + k)); e("v_add_u32 v%d, 0x20000, v%d" % (66 + k, 56 + k))
    e("v_lshlrev_b32 v34, 2, v27"); e("v_sub_u32 v34, v26, v34"); e("v_mov_b32 v35, 0x3f80"); e("v_mov_b32 v36, 0x3f800000")
    for u in range(8):
        b = 8 * (u >> 1) + 2 * (u & 1)
        e("v_cmp_eq_u32 vcc, %d, v34" % b); e("v_cmp_eq_u32 s[46:47], %d, v34" % (b + 1)); e("v_cndmask_b32 v37, 0, v35, vcc"); e("v_cndmask_b32 v37, v37, v36, s[46:47]"); e("v_accvgpr_write_b32 a%d, v37" % (184 + u))
    MK = {'00a': lambda c, h: c < 18, '00b': lambda c, h: (c < 18) == (h == 0), '02a': lambda c, h: c in (0, 16),
          '02b': lambda c, h: (c in (0, 16)) if h == 0 else (c in (1, 17, 20, 21, 22, 23)), '20': lambda c, h: h == 0 and c >= 18,
          '22': lambda c, h: h == 0 and c in (1, 17, 20, 21, 22, 23), 'isv': lambda c, h: c >= 16, 'one': lambda c, h: c in (16, 17),
          'set': lambda c, h: 16 <= c < 24, 'hi': lambda c, h: h == 1, 'lo': lambda c, h: h == 0}
    def ldm(name, reg):
        m = mask(MK[name]); return ["s_mov_b32 s%d, 0x%x" % (reg, m & 0xffffffff), "s_mov_b32 s%d, 0x%x" % (reg + 1, m >> 32)]
    MA, MB = 's[92:93]', 's[94:95]'
    for x in ldm('isv', 92): e(x)
    e("v_mov_b32 v28, 0x358637bd"); e("v_cndmask_b32 v29, v28, 0, %s" % MA)
    for r in range(16): e("v_accvgpr_write_b32 a%d, v28" % (192 + r)); e("v_accvgpr_write_b32 a%d, v29" % (224 + r)); e("v_accvgpr_write_b32 a%d, v28" % (240 + r))
    for s in range(36): e("s_mov_b32 s%d, %d" % (48 + s, s * 16 * 9216))
    for k in range(8): e("s_mov_b32 s%d, %d" % (84 + k, ((k >> 1) * 64 + 16 * (k & 1)) * 1152))
    e("s_mov_b32 s42, 0x3f803f80"); e("s_mov_b32 s43, 0x3fb8aa3b"); e("s_mov_b32 s46, 0x358637bd"); e("v_mov_b32 v%d, 0xb5c1a2a0" % vC)
    if TOUCH:
        e("v_mov_b32 v55, s44")
        e("buffer_load_dword v54, v55, %s, 0 offen sc1" % SDBG, 'pre')
        e("s_mul_i32 s7, s4, %d" % (16 * 6144)); e("s_add_u32 s7, s7, %d" % KVOFF); e("v_mul_u32_u24 v55, 1536, v1"); e("buffer_load_dword v54, v55, %s, s7 offen sc1" % SWS, 'pre')
        e("buffer_load_dword v54, v%d, %s, 0 offen sc1" % (vST, SWS), 'pre')
        e("v_mul_u32_u24 v55, %d, v1" % (9 * 9216)); e("s_mul_i32 s7, s4, 576"); e("buffer_load_dword v54, v55, %s, s7 offen" % SG, 'pre')
        e("buffer_load_dword v54, v%d, %s, 0 offen" % (vDP, SD), 'pre'); e("buffer_load_dword v54, v%d, %s, 0 offen" % (vWO, SO), 'pre')
    e = E.e
    while xis[0] < XN: xdma()
    stamp('setup')
    AHEAD = RING - 2 * BAR
    def sums(g):
        E.wait(lg=('xr', g))
        for r in range(16):
            x = X + 16 * g + r; a = 28 + (r & 3); z = g == 0 and r < 4
            e("v_dot2_f32_bf16 v%d, v%d, s42, %s" % (a, x, "0" if z else "v%d" % a)); e("v_dot2_f32_bf16 v%d, v%d, v%d, %s" % (a + 4, x, x, "0" if z else "v%d" % (a + 4)))
            if r % 4 == 0 and xis[0] == 36 and issued < min(AHEAD, 4 * g + 8): issue_all(issued + 1)
    for g in range(9):
        for k in range(4): xdma()
        E.wait(vm=('x', 4 * g + 3))
        if g in (0, 8): stamp('x%d' % g)
        for k in range(4): e("ds_read_b128 v[%d:%d], v%d offset:%d" % (X + 16 * g + 4 * k, X + 16 * g + 4 * k + 3, (56, 62, 66)[g >> 2] + k, (g & 3) * 16384), ('xr', g))
        if g: sums(g - 1)
    sums(8)
    e("v_pk_add_f32 v[28:29], v[28:29], v[30:31]"); e("v_pk_add_f32 v[32:33], v[32:33], v[34:35]"); e("v_add_f32 v28, v28, v29"); e("v_add_f32 v32, v32, v33"); e("v_mov_b32 v29, v28"); e("v_mov_b32 v33, v32")
    e("v_permlane32_swap_b32 v28, v29"); e("v_permlane32_swap_b32 v32, v33"); e("v_add_f32 v28, v28, v29"); e("v_add_f32 v32, v32, v33")
    e("v_mul_f32 v28, 0x3ae38e39, v28"); e("v_mul_f32 v32, 0x3ae38e39, v32"); e("v_fma_f32 v32, -v28, v28, v32"); e("v_max_f32 v32, 0, v32")
    e("v_cvt_pk_bf16_f32 v28, v32, v28"); e("v_lshlrev_b32 v32, 16, v28"); e("v_and_b32 v28, 0xffff0000, v28"); e("v_add_f32 v32, 0x3727c5ac, v32"); e("v_cvt_pk_bf16_f32 v32, v32, v32"); e("v_lshlrev_b32 v32, 16, v32")
    e("v_sqrt_f32 v32, v32"); e("v_cvt_pk_bf16_f32 v32, v32, v32"); e("v_lshlrev_b32 v32, 16, v32"); e("v_rcp_f32 v%d, v32" % vRS)
    e("v_mul_f32 v%d, -v28, v%d" % (vNB, vRS)); e("v_mov_b32 v%d, v%d" % (vRS + 1, vRS)); e("v_mov_b32 v%d, v%d" % (vNB + 1, vNB))
    def dcomp(s, pk):
        o = []
        for r in range(4): o += ["v_lshlrev_b32 v%d, 16, v%d" % (24 + 2 * r, X + 4 * s + r), "v_and_b32 v%d, 0xffff0000, v%d" % (25 + 2 * r, X + 4 * s + r)]
        for r in range(4):
            if pk: o += ["v_pk_fma_f32 v[%d:%d], v[%d:%d], v[%d:%d], v[%d:%d]" % (24 + 2 * r, 25 + 2 * r, 24 + 2 * r, 25 + 2 * r, vRS, vRS + 1, vNB, vNB + 1)]
            else: o += ["v_fma_f32 v%d, v%d, v%d, v%d" % (24 + 2 * r + h, 24 + 2 * r + h, vRS, vNB) for h in range(2)]
        for r in range(4): o.append("v_cvt_pk_bf16_f32 v%d, v%d, v%d" % (X + 4 * s + r, 24 + 2 * r, 25 + 2 * r))
        return o
    stamp('ln')
    for s in range(NUP):
        for x in dcomp(s, True): e(x)
        issue_all(min(AHEAD, issued + 1))
    issue_all(AHEAD)
    stamp()
    ml = []; ev = {}
    def rd(q, regs3, off, d2):
        a = slot(q) * 4096 + off
        return (regs3[a >> 16], a & 0xffff, d2)
    def mf(D, A, B, first): return "v_mfma_f32_32x32x16_bf16 %s, %s, %s, %s" % (D, A, B, "0" if first else D)
    def R(k, b, n): return "%s[%d:%d]" % (k, b, b + n - 1)
    q = 0; segs = []
    segs.append(len(ml))
    for s in range(36):
        for t in range(4):
            xs = R('v', X + 4 * s, 4); D = R('a', 192 + 16 * t, 16)
            ml.append((q, rd(q, [40 + 3 * t, 41 + 3 * t, 42 + 3 * t], 0, 1024), mf(D, "{F}", xs, False) if t == 3 else mf(D, xs, "{F}", s == 0 and t == 1)))
        q += 1
    for u in range(4):
        segs.append(len(ml))
        for s in range(36):
            for m in range(4):
                ml.append((q, rd(q, vP[m & 1], (m >> 1) * 2048, 512), mf(R('a', 64 * (u & 1) + 16 * m, 16), "{F}", R('v', X + 4 * s, 4), s == 0)))
            q += 1
    segs.append(len(ml))
    for s in range(18):
        for m in range(4):
            k = 2 * s + (m >> 1)
            ml.append((q, rd(q, vS, (m & 1) * 2048 + (m >> 1) * 1024, 256), mf(R('a', 32 * (m & 1), 16), "{F}", R('v', X + 4 * k, 4), k == 0)))
        q += 1
    pst = {}; pen = {}
    P2 = len(ml)
    for p in range(10): segs.append(P2 + 42 * p)
    for p, k2 in sched:
        pst.setdefault((p, k2), len(ml))
        for m in range(4):
            ml.append((q, rd(q, vP[m & 1], (m >> 1) * 2048, 512), mf(R('v', X + 32 * (p % NS) + 16 * (m & 1), 16), "{F}", R('a', 128 + 8 * k2 + 4 * (m >> 1), 4), k2 == 0 and m < 2)))
        q += 1
        if k2 == 9:
            for t in range(2):
                ml.append((None, (vE[t], p * 1024, 512), mf(R('v', X + 32 * (p % NS) + 16 * t, 16), "{F}", R('a', 208, 4), False)))
            pen[p] = len(ml)
    NM = len(ml)
    QE = []; QB = []
    to = []
    for s in range(NUP, 36):
        QE += dcomp(s, False); QE.append(('due', 4 * s))
    def epi(A, ntile, ust, hb):
        o = []
        for t in range(ntile):
            for r4 in range(0, 16, 4):
                T = 24 + (r4 & 4) * 2
                g = A + 16 * t + r4
                for k in range(4): o.append("v_accvgpr_read_b32 v%d, a%d" % (T + k, g + k))
                for k in range(4): o.append("v_accvgpr_read_b32 v%d, a%d" % (T + 4 + k, g + ust + k))
                for k in range(4): o.append("v_max_f32 v%d, 0, v%d" % (T + k, T + k))
                for k in range(4): o.append("v_mul_f32 v%d, v%d, v%d" % (T + k, T + k, T + 4 + k))
                for k in (0, 2): o.append("v_cvt_pk_bf16_f32 v%d, v%d, v%d" % (T + k, T + k, T + k + 1))
                for k in (0, 2): o.append("v_accvgpr_write_b32 a%d, v%d" % (hb + 8 * t + (r4 + k) // 2, T + k))
        return o
    for u in range(4):
        QE.append(('at', segs[u + 2] + 2)); QE += epi(64 * (u & 1), 2, 32, 128 + 16 * u); QE.append(('due', segs[u + 3]))
    QE.append(('at', segs[6] + 2)); QE += epi(0, 1, 32, 192); QE.append(('due', pst[(0, 8)] - 1))
    def epi2(p):
        o = []
        for t in range(2):
            for h in range(2):
                T = 24 + 4 * (2 * t + h); A = X + 32 * (p % NS) + 16 * t + 8 * h
                for k in range(4): o.append("v_cvt_pk_bf16_f32 v%d, v%d, v%d" % (T + k, A + 2 * k, A + 2 * k + 1))
                o.append(('grp', ["s_mov_b32 s6, %d" % (p * 16384), ("buffer_store_dwordx4 v[%d:%d], v%d, %s, s6 offen offset:%d%s" % (T, T + 3, vST, SWS, 1024 * (2 * t + h), " sc0 sc1" if V2 else STF), ('st', p))]))
        return o
    for p in range(8):
        QE.append(('at', pen[p] + 3)); QE += epi2(p); QE.append(('due', min(pen[p] + 42, NM)))
    B = QB.append
    B(('at', segs[1] + 2))
    def phi(src, dstf, mode):
        o = []
        for r in range(0, 16, 2):
            T = 40 + (r & 2) * 2
            d = dstf(r // 2)
            o += ["v_accvgpr_read_b32 v%d, a%d" % (T, src + r), "v_accvgpr_read_b32 v%d, a%d" % (T + 1, src + r + 1)]
            if mode != 'v':
                o += ["v_fma_f32 v%d, v%d, s43, v%d" % (T + 2 + h, T + h, vC) for h in range(2)]
                if mode == 'mix': o += ["v_cvt_pk_bf16_f32 v72, v%d, v%d" % (T, T + 1)]
                for h in range(2): o += [('x2', "v_exp_f32 v%d, v%d clamp" % (T + 2 + h, T + 2 + h)), "v_max_f32 v%d, s46, v%d" % (T + h, T + h)]
                o += ["v_add_f32 v%d, v%d, v%d" % (T + h, T + h, T + 2 + h) for h in range(2)]
            if d[0] == 'v':
                o += ["v_cvt_pk_bf16_f32 %s, v%d, v%d" % (d, T, T + 1)]
                if mode == 'mix': o += ["v_cndmask_b32 %s, %s, v72, %s" % (d, d, MA), "v_cndmask_b32 %s, %s, v73, %s" % (d, d, MB)]
            else: o += ["v_cvt_pk_bf16_f32 v%d, v%d, v%d" % (T, T, T + 1), "v_accvgpr_write_b32 %s, v%d" % (d, T)]
        return o
    QB.extend(["v_mov_b32 v73, s42", "s_mul_i32 s7, s3, 6144", "s_add_u32 s7, s7, %d" % SCR, "v_lshl_add_u32 v74, v1, 4, s7"] + ldm('one', 94))
    for t, md in ((0, 'phi'), (1, 'v'), (2, 'mix')):
        QB.extend(phi(192 + 16 * t, lambda u: 'v%d' % (48 + 8 * t + u), md))
        for k in range(2): B(("ds_write_b128 v74, v[%d:%d] offset:%d" % (48 + 8 * t + 4 * k, 51 + 8 * t + 4 * k, 2048 * t + 1024 * k), 'tw'))
    QB.extend(["s_lshr_b32 s7, s3, 1", "s_lshl_b32 s7, s7, 12", "s_add_u32 s7, s7, %d" % SCR, "v_lshl_add_u32 v22, v1, 4, s7", "s_and_b32 s7, s3, 1", "s_lshl_b32 s7, s7, 11", "s_add_u32 s7, s7, %d" % (SCR + 2048), "v_lshl_add_u32 v23, v1, 4, s7"])
    B(('mf', mf('v[72:87]', 'v[64:67]', 'a[184:187]', True))); B(('mf', mf('v[72:87]', 'v[68:71]', 'a[188:191]', False)))
    B(('soft', 'tw'))
    QB.extend(phi(240, lambda u: 'a%d' % (240 + u), 'phi'))
    QB.extend(["v_cvt_pk_bf16_f32 v76, v76, v77", "v_cvt_pk_bf16_f32 v78, v78, v79", "v_accvgpr_write_b32 a248, 0", "v_accvgpr_write_b32 a249, 0", "v_accvgpr_write_b32 a250, v76", "v_accvgpr_write_b32 a251, v78"])
    B(('hard',))
    def opr(k, b): return R('a', 192 + 8 * k + 4 * b, 4) if k < 6 else R('v', 48 + 8 * (k - 6) + 4 * b, 4)
    for k in range(8):
        for b in range(2): B(('x2', ("ds_read_b128 %s, v%d offset:%d" % (opr(k, b), 22 + b, (k >> 1) * 6144 + (k & 1) * 1024), ('tr', k))))
    QB.extend(ldm('set', 92) + ldm('lo', 94) + ["v_and_b32 v41, 3, v1", "v_bfe_u32 v42, v1, 3, 1", "v_lshl_add_u32 v41, v42, 2, v41", "v_lshrrev_b32 v42, 5, v1", "v_lshl_add_u32 v41, v42, 3, v41", "v_lshlrev_b32 v41, 4, v41",
               "v_add_u32 v41, 4096, v41", "v_lshlrev_b32 v40, 4, v1", ('grp', ["s_cmp_eq_u32 s3, 2", "s_cselect_b64 s[94:95], s[94:95], -1"]), ('grp', ["s_bitcmp1_b32 s3, 0", "s_cselect_b64 s[94:95], s[92:93], s[94:95]", "s_cselect_b64 s[92:93], -1, 0"]),
               "v_cndmask_b32 v40, v40, v41, s[92:93]", "s_lshl_b32 s7, s4, 4", "s_add_u32 s7, s7, s5", "s_mul_i32 s7, s7, 6144", "s_add_u32 s7, s7, %d" % KVOFF, "v_add_u32 v40, s7, v40", "v_mov_b32 v42, 0x7fffff00", "v_cndmask_b32 v40, v42, v40, s[94:95]",
               "v_add_u32 v41, %d, v41" % PREG, "v_accvgpr_write_b32 a252, v41"])
    for k in range(8):
        B(('wait', None, ('tr', k))); B(('mf', mf('v[72:87]', opr(k, 0), opr(k, 1), k == 0)))
    QB.extend([('grp', ["s_cmp_eq_u32 s3, 0", "s_cselect_b32 s100, 4, 1"]), "s_lshl_b32 s100, s100, 8", "s_mul_i32 s101, s100, 3", ('grp', ["s_cmp_eq_u32 s3, 2", "s_cselect_b32 s101, 5376, s101"]), ('grp', ["s_cmp_eq_u32 s3, 3", "s_cselect_b32 s101, 1024, s101"]),
               ('grp', ["s_cmp_ge_u32 s3, 2", "s_cselect_b32 s7, 0x400000, 0"]),
               "s_mul_i32 s47, s4, %d" % (16 * 6144), "s_mul_i32 s45, s3, 1536", "s_add_u32 s47, s47, s45", "s_add_u32 s47, s47, %d" % KVOFF, "v_lshl_add_u32 v22, v1, 4, s47", "v_lshl_add_u32 v23, v1, 3, s47",
               "v_lshl_add_u32 v2, v1, 2, s40", "v_mov_b32 v19, 1", "v_accvgpr_read_b32 v43, a183"])
    for g in range(4):
        B(("buffer_store_dwordx4 v[%d:%d], v40, %s, %s offen sc0 sc1" % (72 + 4 * g, 75 + 4 * g, SWS, "s7" if g < 3 else "s101"), 'kvst'))
        if g < 2: B("s_add_u32 s7, s7, s100")
    B(('due', segs[4] - 1))
    B(('grp', ["s_cmp_eq_u32 s3, 0", "s_cselect_b32 s100, 0x01010101, 0"]))
    B(('delay', SDELAY)); B(('syncv', 'kvst'))
    B(("buffer_store_byte v19, v%d, %s, 0 offen sc0 sc1" % (vFL, SDBG), 'fl'))
    for k in range(3):
        B(('grp', ["s_add_u32 m0, s40, %d" % (E1W + 4096 * k) if k < 2 else "s_mov_b32 m0, %d" % (E1W + 8192), "s_mov_b32 s7, %d" % (512 * k) if k < 2 else "s_lshl_b32 s7, s3, 7"] +
                   ([] if k < 2 else ["s_sub_u32 s7, 1024, s7"]) + [("buffer_load_dwordx4 v43, %s, s7 offen lds" % SO, 'e1w')], 'm0'))
    npoll = [0]
    def poll(ld, vt, cmp, dly):
        n = npoll[0]; npoll[0] += 1
        o = [(ld, ('poll', n)), ('delay', dly), ('stamp', 'prepoll'), ('wait', ('poll', n), None),
             ('grp', [cmp, "s_cmp_lg_u64 vcc, 0", "s_cbranch_scc1 L_slow%d" % n, ('raw', "L_back%d:" % n)]), ('stamp', 'postpoll')]
        to.extend(["L_slow%d:" % n, "s_mov_b32 s44, 0x20000", "L_spin%d:" % n, "s_sleep 2", ld, "s_waitcnt vmcnt(0)",
                   cmp, "s_cmp_eq_u64 vcc, 0", "s_cbranch_scc1 L_back%d" % n, "s_sub_u32 s44, s44, 1", "s_cmp_lg_u32 s44, 0", "s_cbranch_scc1 L_spin%d" % n, "s_branch L_back%d" % n])
        return o
    B(('delay', PDELAY))
    QB.extend(poll("buffer_load_dword v19, v2, %s, 0 offen sc1" % SDBG, 19, "v_cmp_ne_u32 vcc, s100, v19", GDELAY))
    B(('sync', 'tw'))
    for ii in range(16):
        c, k = ('v', 40 + 6 * ii) if ii < 8 else ('a', 192 + 6 * (ii - 8))
        B("s_add_u32 s7, s5, %d" % ii); B("s_and_b32 s7, s7, 15")
        B(('grp', ["s_mul_i32 s7, s7, 6144", ("buffer_load_dwordx4 %s, v22, %s, s7 offen sc1" % (R(c, k, 4), SWS), ('g', ii))]))
        B(("buffer_load_dwordx2 %s, v23, %s, s7 offen offset:1024 sc1" % (R(c, k + 4, 2), SWS), ('g', ii)))
        if GSP: B(('delay', GSP))
    B(('delay', max(0, GDELAY - 24 - 8 * GSP)))
    for ii in range(1, 16):
        B(('wait', ('g', ii), None))
        if ii >= 8:
            for r in range(6): B("v_accvgpr_read_b32 v%d, a%d" % (46 + r, 192 + 6 * (ii - 8) + r))
        for r in range(6): B("v_add_f32 v%d, v%d, v%d" % (40 + r, 40 + r, (40 + 6 * ii if ii < 8 else 46) + r))
    B(('due', segs[6]))
    QB.extend(["s_add_u32 s45, s45, %d" % PREG, "v_lshl_add_u32 v22, v1, 4, s45", "v_lshl_add_u32 v23, v1, 3, s45", ("ds_write_b128 v22, v[40:43]", 'sw'), ("ds_write_b64 v23, v[44:45] offset:1024", 'sw'),
               "v_lshlrev_b32 v22, 4, v1", "v_add_u32 v22, %d, v22" % PREG, "v_accvgpr_read_b32 v23, a252"] + ldm('00a', 92) + ldm('00b', 94))
    for a in (232, 233, 236, 237, 208, 209): B("v_accvgpr_write_b32 a%d, 0" % a)
    B(('sync', 'sw'))
    for g in range(4): B(('x2', ("ds_read_b128 v[%d:%d], v22 offset:%d" % (40 + 4 * g, 43 + 4 * g, 1024 * g), 'rb0')))
    for g in range(5): B(('x2', ("ds_read_b128 v[%d:%d], v23 offset:%d" % (56 + 4 * g, 59 + 4 * g, 256 * g), 'rb1')))
    B(("ds_read_b128 v[76:79], v22 offset:5376", 'rb1'))
    def cv(b, n, dst, masks):
        o = []
        for r in range(0, n, 2): o.append("v_cvt_pk_bf16_f32 v%d, v%d, v%d" % (b + r, b + r, b + 1 + r))
        for r in range(0, n, 2): o.append("v_cndmask_b32 v%d, 0, v%d, %s" % (b + r, b + r, masks(r)))
        for r in range(0, n, 2): o.append("v_accvgpr_write_b32 a%d, v%d" % (dst + r // 2, b + r))
        return o
    B(('wait', None, 'rb0')); QB.extend(cv(40, 16, 216, lambda r: MA if r < 2 else MB))
    QB.extend(ldm('02a', 92) + ldm('02b', 94)); B(('wait', None, 'rb1')); QB.extend(cv(56, 16, 224, lambda r: MA if r < 2 else MB))
    QB.extend(ldm('22', 92) + ldm('20', 94)); QB.extend(cv(72, 4, 238, lambda r: MA)); QB.extend(cv(76, 4, 234, lambda r: MB))
    QB.extend(ldm('hi', 92))
    for k in range(3):
        B(('mf', mf('v[60:75]', R('a', (224, 228, 236)[k], 4), R('a', 240 + 4 * k, 4), k == 0)))
        B(('mf', mf('v[44:59]', R('a', (216, 220, 232)[k], 4), R('a', 240 + 4 * k, 4), k == 0)))
    B(('delay', 3))
    QB.extend(["v_add_f32 v60, s46, v60", "v_add_f32 v61, s46, v61", ('x2', "v_rcp_f32 v60, v60"), ('x2', "v_rcp_f32 v61, v61"), "v_mul_f32 v44, v44, v60", "v_mul_f32 v45, v45, v60", "v_cndmask_b32 v61, v60, v61, %s" % MA])
    for r in list(range(46, 60)) + [64, 65, 66, 67]: B("v_mul_f32 v%d, v%d, v61" % (r, r))
    for r in list(range(44, 60, 2)) + [64, 66]: B("v_cvt_pk_bf16_f32 v%d, v%d, v%d" % (r, r, r + 1))
    for r in (64, 66): B("v_cndmask_b32 v%d, 0, v%d, %s" % (r, r, MA))
    for k in range(8): B("v_accvgpr_write_b32 a%d, v%d" % (200 + k, 44 + 2 * k))
    B("v_accvgpr_write_b32 a210, v64"); B("v_accvgpr_write_b32 a211, v66"); B(('due', pst[(0, 9)] - 2))
    class Q:
        def __init__(s, items): s.it = items; s.i = 0; s.block = None; s.until = 0; s.soft = None
    qe, qb = Q(QE), Q(QB)
    m0free = [True]
    def emit1(x):
        if isinstance(x, str): e(x)
        elif x[0] == 'raw': E.raw(x[1])
        else: e(x[0], x[1])
    def pull(Qq, idx, budget, force=False):
        n = 0
        while Qq.i < len(Qq.it) and (n < budget or force):
            if Qq.block or idx < Qq.until:
                assert not force or True
                return n
            x = Qq.it[Qq.i]
            if isinstance(x, tuple) and x[0] in ('at', 'due', 'wait', 'sync', 'syncv', 'nat', 'delay', 'grp', 'mf', 'stamp', 'soft', 'hard', 'x2'):
                k = x[0]
                if k == 'at':
                    if idx < x[1]: return n
                elif k == 'due':
                    if Qq is qb: print("qb due", idx, x[1], file=sys.stderr)
                    assert idx < x[1], ("missed deadline", idx, x[1], Qq.i)
                elif k == 'wait': E.wait(vm=x[1], lg=x[2])
                elif k in ('sync', 'nat', 'syncv'): Qq.block = x
                elif k == 'stamp': stamp(x[1])
                elif k == 'soft': Qq.soft = x[1]
                elif k == 'hard':
                    if Qq.soft: return n
                elif k == 'x2':
                    if n > 0 and budget - n < 2: return n
                    emit1(x[1]); n += 2
                elif k == 'delay': Qq.until = idx + x[1]
                elif k == 'grp':
                    if n > 0 and len(x[1]) > budget - n: return n
                    if len(x) > 2 and not m0free[0]: return n
                    for y in x[1]: emit1(y)
                    n += len(x[1])
                elif k == 'mf':
                    e(x[1]); n += budget
            else:
                emit1(x); n += 1
            Qq.i += 1
        return n
    def barrier(qq):
        lg = None
        if qb.block and qb.block[0] == 'sync': lg = qb.block[1]
        E.wait(vm=('q', min(qq + BAR, NQ) - 1), lg=lg or qb.soft); qb.soft = None
        if qb.block and qb.block[0] == 'syncv': E.wait(vm=qb.block[1]); lg = 1
        e("s_barrier")
        if lg: qb.block = None
        if qb.block and qb.block[0] == 'nat' and E.vm_covered(qb.block[1]): qb.block = None
    lastq = [-1]
    def reads(f):
        qq, (vb, off, d2), _ = ml[f]
        if qq is not None and qq != lastq[0]:
            lastq[0] = qq
            if qq % BAR == 0: barrier(qq)
        r = FB + (f % PF) * 4
        e("ds_read_b64_tr_b16 v[%d:%d], v%d offset:%d" % (r, r + 1, vb, off), ('f', f)); e("ds_read_b64_tr_b16 v[%d:%d], v%d offset:%d" % (r + 2, r + 3, vb, off + d2), ('f', f))
    E.wait(lg='all')
    for f in range(PF): reads(f)
    pend = None
    for f in range(NM):
        if f in segs[1:8] or f == segs[10]: stamp('seg%d' % segs.index(f))
        if f % WE == 0: E.wait(lg=('f', min(f + WE - 1, NM - 1)))
        r = FB + (f % PF) * 4
        e(ml[f][2].replace("{F}", "v[%d:%d]" % (r, r + 3)))
        t0 = E.t
        if f + PF < NM: reads(f + PF)
        if pend is not None:
            e(pend, ('q', issued)); issued += 1; pend = None
        qq = ml[f][0]
        d = None
        if qq is not None and (f + 1 == NM or ml[f + 1][0] != qq) and issued < NQ: d = dma(issued)
        seg = max(k for k in range(len(segs)) if segs[k] <= f)
        sl = SL[min(seg, len(SL) - 1)]
        left = int(sl * (f + 1)) - int(sl * f) - (E.t - t0) - (len(d[0]) if d else 0) - (f % WE == WE - 1)
        k = qe.i
        while k < len(qe.it) and not (isinstance(qe.it[k], tuple) and qe.it[k][0] == 'due'): k += 1
        urgent = k < len(qe.it) and (k - qe.i) >= (SL[min(seg, len(SL) - 1)] - 3.2) * (qe.it[k][1] - f - 6)
        if urgent:
            n = pull(qe, f, left); pull(qb, f, left - n)
        else:
            n = pull(qb, f, left); pull(qe, f, left - n)
        if d:
            [e(y) for y in d[0]]; pend = d[1]
    assert qe.i == len(qe.it) and qb.i == len(qb.it), (qe.i, len(qe.it), qb.i, len(qb.it))
    for x in epi2(8):
        if isinstance(x, str): e(x)
        else:
            for y in x[1]: emit1(y)
    if STAMP:
        stamp("end"); E.wait(vm='all'); stamp("drain")
        print("stamps", len(stamps), stamps, file=sys.stderr)
        e("s_mul_i32 s44, s2, %d" % (16 * len(stamps))); e("s_add_u32 s44, s44, %d" % STOFF); e("v_lshl_add_u32 v40, v1, 4, s44")
        e("s_lshl_b32 s45, s3, 6"); e("v_add_u32 v41, s45, v1"); e("v_cmp_gt_u32 vcc, %d, v41" % len(stamps)); e("v_mov_b32 v41, 0x7fffff00"); e("v_cndmask_b32 v40, v41, v40, vcc")
        e("v_mov_b32 v44, v20"); e("v_mov_b32 v46, v20"); e("v_mov_b32 v45, 0"); e("v_mov_b32 v47, 0"); e("v_permlane32_swap_b32 v44, v46"); e("buffer_store_dwordx4 v[44:47], v40, %s, 0 offen" % SWS)
    E.raw("L_done:"); E.raw("s_endpgm")
    for x in to: E.raw(x)
    print("nops inserted", E.nops, "lines", len(E.L), file=sys.stderr)
    return E.L
def gen_red():
    E = Em(); e = E.e
    E.raw("red_kernel:")
    e("s_cmp_ge_u32 s2, 576"); e("s_cbranch_scc1 L_done2")
    e("s_load_dwordx2 s[8:9], s[0:1], 0"); e("s_load_dwordx2 s[12:13], s[0:1], 56"); e("s_load_dwordx2 s[16:17], s[0:1], 72")
    e("s_mov_b32 s10, %d" % (2048 * 1152)); e("s_mov_b32 s11, 0x20000"); e("s_mov_b32 s14, %d" % (2048 * 1152)); e("s_mov_b32 s15, 0x20000"); e("s_mov_b32 s18, 0x10000000"); e("s_mov_b32 s19, 0x20000")
    e("s_lshr_b32 s3, s2, 2"); e("s_and_b32 s4, s2, 3"); e("s_mul_i32 s5, s3, 7282"); e("s_lshr_b32 s5, s5, 16"); e("s_mul_i32 s6, s5, 9"); e("s_sub_u32 s6, s3, s6")
    e("v_and_b32 v1, 7, v0"); e("v_lshrrev_b32 v2, 6, v0"); e("v_lshl_add_u32 v1, v2, 3, v1"); e("v_bfe_u32 v2, v0, 3, 2"); e("v_bfe_u32 v3, v0, 5, 1")
    e("v_lshlrev_b32 v4, 4, v1"); e("v_lshl_add_u32 v4, v2, 10, v4"); e("v_lshl_add_u32 v4, v3, 9, v4")
    e("s_mul_i32 s7, s5, 144"); e("s_add_u32 s7, s7, s6"); e("s_lshl_b32 s7, s7, 14"); e("s_lshl_b32 s20, s4, 12"); e("s_add_u32 s7, s7, s20"); e("v_add_u32 v4, s7, v4")
    e("s_lshl_b32 s7, s5, 7"); e("s_lshl_b32 s20, s4, 5"); e("s_add_u32 s7, s7, s20"); e("v_add_u32 v5, s7, v1"); e("v_mul_u32_u24 v5, 1152, v5"); e("v_bfe_u32 v2, v0, 3, 3"); e("v_lshl_add_u32 v5, v2, 4, v5"); e("s_lshl_b32 s7, s6, 7"); e("v_add_u32 v5, s7, v5")
    e("s_waitcnt lgkmcnt(0)")
    for j in range(16):
        e("s_mov_b32 s20, %d" % (j * 9 * 16384)); e("buffer_load_dwordx4 v[%d:%d], v4, s[16:19], s20 offen" % (16 + 4 * j, 19 + 4 * j), j)
    e("buffer_load_dwordx4 v[80:83], v5, s[8:11], 0 offen", 16)
    e("s_mov_b32 s21, 0x3f80"); e("s_mov_b32 s22, 0x3f800000")
    for j in range(17):
        E.wait(vm=j)
        for r in range(4):
            for h in range(2): e("v_dot2_f32_bf16 v%d, v%d, s%d, %s" % (8 + 2 * r + h, 16 + 4 * j + r, 21 + h, "0" if j == 0 else "v%d" % (8 + 2 * r + h)))
    for r in range(4): e("v_cvt_pk_bf16_f32 v%d, v%d, v%d" % (16 + r, 8 + 2 * r, 9 + 2 * r))
    e("buffer_store_dwordx4 v[16:19], v5, s[12:15], 0 offen")
    E.raw("L_done2:"); E.raw("s_endpgm")
    return E.L
def build(**kw):
    V2 = kw.get('V2', False)
    H = []
    if V2: H.append("; @launch grid=(256,1,1) block=(256,1,1) lds=163840")
    else:
        H.append("; @launch kernel=%s_kernel grid=(256,1,1) block=(256,1,1) lds=163840" % NAME); H.append("; @launch kernel=red_kernel grid=(576,1,1) block=(256,1,1) lds=0")
    H += ['.amdgcn_target "amdgcn-amd-amdhsa--gfx950"', ".text", ".globl %s_kernel" % NAME, ".p2align 8", ".type %s_kernel,@function" % NAME]
    H += gen(**kw)
    if not V2: H += [".globl red_kernel", ".p2align 8", ".type red_kernel,@function"] + gen_red()
    s = "\n".join(H) + "\n" + KD % (NAME + "_kernel", 512, 256)
    if not V2: s += KD % ("red_kernel", 88, 88)
    return s
if __name__ == "__main__":
    kw = eval("dict(%s)" % (sys.argv[2] if len(sys.argv) > 2 else ""))
    open(sys.argv[1], "w").write(build(**kw))
    import subprocess
    r = subprocess.run(["clang", "-x", "assembler", "-target", "amdgcn-amd-amdhsa", "-mcpu=gfx950", "-c", sys.argv[1], "-o", "t.o"], capture_output=True, text=True)
    if r.returncode: print("ASM ERROR", r.stderr[:1500])
```
